```python
import torch

def _softmax(x, axis=-1):
    return torch.softmax(x, dim=axis)
def _gelu(x):
    return torch.nn.functional.gelu(x, approximate="tanh")
def _silu(x):
    return torch.nn.functional.silu(x)
def _sigmoid(x):
    return torch.sigmoid(x)
def _layernorm(x, axis=-1, eps=1e-5):
    m = x.mean(dim=axis, keepdim=True)
    v = x.var(dim=axis, keepdim=True, unbiased=False)
    return (x - m) / torch.sqrt(v + eps)
def _scatter_add(tgt, idx, src, axis=0):
    return tgt.clone().index_add_(axis, idx, src)
def _segment_sum(src, seg, n):
    out = torch.zeros((n,) + src.shape[1:], dtype=src.dtype)
    return out.index_add_(0, seg, src)
def _pad(x, pw):
    flat = tuple(v for pair in reversed(pw) for v in pair)
    return torch.nn.functional.pad(x, flat)

kernel_name = 'interleave_layers__mha_block_cached__glu_gated_reglu__decode'

def setup_inputs():

    _w = (lambda a: (lambda t: t.to(torch.bfloat16) if t.is_floating_point() else t)(torch.as_tensor(a)))
    def _A_setup():
        B, Sq, D = 2, 1, 640
        H, Sk, Dh = 32, 4096, 192
        return {
            "x": _w((lambda *s: torch.randn(*s, dtype=torch.bfloat16) * 0.05)(B, Sq, D)),
            "k_cache": _w((lambda *s: torch.randn(*s, dtype=torch.bfloat16) * 0.8)(B, H, Sk, Dh)),
            "v_cache": _w((lambda *s: torch.randn(*s, dtype=torch.bfloat16) * 0.8)(B, H, Sk, Dh)),
            "wq": _w((lambda *s: torch.randn(*s, dtype=torch.bfloat16) * 0.8)(D, H * Dh) * (D ** -0.5)),
            "wo": _w((lambda *s: torch.randn(*s, dtype=torch.bfloat16) * 0.8)(H * Dh, D) * ((H * Dh) ** -0.5)),
        }
    _A_in = _A_setup()

    def _B_setup():
        B, S, D, F = 2, 1, 640, 1536
        return {
            "x": _w((lambda *s: torch.randn(*s, dtype=torch.bfloat16) * 0.05)(B, S, D)),
            "W_gate": _w((lambda *s: torch.randn(*s, dtype=torch.bfloat16) * 0.2)(D, F) * (2.0 / D) ** 0.5),
            "W_up": _w((lambda *s: torch.randn(*s, dtype=torch.bfloat16) * 0.2)(D, F) * (2.0 / D) ** 0.5),
            "W_down": _w((lambda *s: torch.randn(*s, dtype=torch.bfloat16) * 0.2)(F, D) * (1.0 / F) ** 0.5),
        }
    _B_in = _B_setup()

    return {
        "A_x": _A_in["x"],
        "A_k_cache": _A_in["k_cache"],
        "A_v_cache": _A_in["v_cache"],
        "A_wq": _A_in["wq"],
        "A_wo": _A_in["wo"],
        "B_x": _B_in["x"],
        "B_W_gate": _B_in["W_gate"],
        "B_W_up": _B_in["W_up"],
        "B_W_down": _B_in["W_down"],
    }

def reference(A_x, A_k_cache, A_v_cache, A_wq, A_wo, B_x, B_W_gate, B_W_up, B_W_down):
    def _A_ref(x, k_cache, v_cache, wq, wo):
        B, Sq, D = x.shape
        H, Dh = 32, 192
        q = (lambda x, *d: x.permute(*d))((x @ wq).reshape(B, Sq, H, Dh), 0, 2, 1, 3)
        scores = torch.einsum("bhqd,bhkd->bhqk", q, k_cache) * (Dh ** -0.5)
        p = _softmax(scores, axis=-1)
        o = torch.einsum("bhqk,bhkd->bhqd", p, v_cache)
        return (lambda x, *d: x.permute(*d))(o, 0, 2, 1, 3).reshape(B, Sq, H * Dh) @ wo

    def _B_ref(x, W_gate, W_up, W_down):
        gate = torch.einsum("bsd,df->bsf", x, W_gate)
        up = torch.einsum("bsd,df->bsf", x, W_up)
        gate = gate * (lambda x, dt: x.to(dt))(gate > 0, gate.dtype)
        h = gate * up
        return torch.einsum("bsf,fd->bsd", h, W_down)

    x = A_x
    x = x + _A_ref(_layernorm(x, axis=-1), A_k_cache, A_v_cache, A_wq, A_wo)
    x = x + _B_ref(_layernorm(x, axis=-1), B_W_gate, B_W_up, B_W_down)
    x = x + _A_ref(_layernorm(x, axis=-1), A_k_cache, A_v_cache, A_wq, A_wo)
    x = x + _B_ref(_layernorm(x, axis=-1), B_W_gate, B_W_up, B_W_down)
    return x
```

```python
import re

REG_RE = re.compile(r'(?<![\w.])([vas])(\d+)(?![\w\[])|(?<![\w.])([vas])\[(\d+):(\d+)\]|\b(vcc|exec|m0|scc)\b')

TRANS = ('v_exp_f32', 'v_log_f32', 'v_rcp_f32', 'v_rsq_f32', 'v_sqrt_f32', 'v_sin_f32', 'v_cos_f32')


def regs_of(tok):
    out = set()
    for m in REG_RE.finditer(tok):
        if m.group(1):
            out.add((m.group(1), int(m.group(2))))
        elif m.group(3):
            for r in range(int(m.group(4)), int(m.group(5)) + 1):
                out.add((m.group(3), r))
        else:
            out.add((m.group(6), 0))
    return out


def split_ops(s):
    ops, depth, cur = [], 0, ''
    for ch in s:
        if ch == '[':
            depth += 1
        if ch == ']':
            depth -= 1
        if ch == ',' and depth == 0:
            ops.append(cur.strip())
            cur = ''
        else:
            cur += ch
    if cur.strip():
        ops.append(cur.strip())
    return ops


class Ins:
    __slots__ = ('text', 'op', 'kind', 'w', 'r', 'states', 'dpp', 'cc', 'wide_store', 'lds_dma')


def parse(text):
    t = text.split(';')[0].strip()
    i = Ins()
    i.text = text
    m = re.match(r'(\S+)\s*(.*)', t)
    op, rest = m.group(1), m.group(2)
    i.op = op
    ops = split_ops(rest)
    i.w, i.r, i.cc = set(), set(), set()
    i.states = 1
    i.dpp = ('row_' in rest and ('row_ror' in rest or 'row_shr' in rest or 'row_shl' in rest or 'row_bcast' in rest
                                 or 'row_mirror' in rest or 'row_half_mirror' in rest or 'row_newbcast' in rest)) or 'quad_perm' in rest
    i.wide_store = False
    i.lds_dma = False
    base = list(ops)
    if op == 's_nop':
        i.kind = 'nop'
        i.states = int(rest, 0) + 1
        return i
    if op.startswith('v_mfma'):
        i.kind = 'mfma'
        i.w = regs_of(base[0])
        i.r = regs_of(base[1]) | regs_of(base[2])
        i.cc = regs_of(base[3].split()[0])
        i.r |= i.cc
        return i
    if op.startswith('v_'):
        i.kind = 'valu'
        if op.startswith('v_cmp'):
            i.w = regs_of(base[0])
            for o in base[1:]:
                i.r |= regs_of(o)
        elif op.startswith('v_permlane') and 'swap' in op:
            i.w = regs_of(base[0]) | regs_of(base[1])
            i.r = set(i.w)
        else:
            i.w = regs_of(base[0])
            for o in base[1:]:
                i.r |= regs_of(o)
            if op.startswith('v_fmac') or op.startswith('v_dot2c') or op.startswith('v_writelane'):
                i.r |= i.w
            if i.dpp:
                i.r |= i.w
            if op.startswith('v_cndmask') and len(base) == 3:
                i.r.add(('vcc', 0))
            if op.startswith('v_add_co') or op.startswith('v_sub_co') or op.startswith('v_addc'):
                i.w |= regs_of(base[1])
        return i
    if op.startswith('buffer_') or op.startswith('global_'):
        i.kind = 'vmem'
        lds = re.search(r'\blds\b', rest) is not None
        i.lds_dma = lds
        if 'load' in op and not lds:
            i.w = regs_of(base[0])
            for o in base[1:]:
                i.r |= regs_of(o)
        else:
            for o in base:
                i.r |= regs_of(o)
            if lds:
                i.r.add(('m0', 0))
            if 'store' in op and ('x3' in op or 'x4' in op):
                i.wide_store = True
                i.cc = regs_of(base[0])
        return i
    if op.startswith('ds_'):
        i.kind = 'ds'
        if op.startswith('ds_read') or 'permute' in op or 'swizzle' in op:
            i.w = regs_of(base[0])
            for o in base[1:]:
                i.r |= regs_of(o)
        else:
            for o in base:
                i.r |= regs_of(o)
        return i
    if op.startswith('s_'):
        i.kind = 'salu'
        if op.startswith(('s_cmp', 's_cbranch', 's_branch', 's_waitcnt', 's_barrier', 's_sleep', 's_endpgm', 's_setprio', 's_setpc')):
            for o in base:
                i.r |= regs_of(o)
        else:
            if base:
                i.w = regs_of(base[0])
            for o in base[1:]:
                i.r |= regs_of(o)
        return i
    raise ValueError('cannot parse: ' + text)


def isv(r):
    return r[0] in 'va' and r[0] != 'vcc' and len(r[0]) == 1


class Asm:
    def __init__(self):
        self.lines = []
        self.hist = []
        self.nops = 0
        self.vm = []
        self.vm_done = 0

    def need(self, c):
        miss = 0
        dist = 0
        for p in reversed(self.hist):
            req = 0
            pk, ck = p.kind, c.kind
            cv_r = {r for r in c.r if isv(r)}
            cv_w = {r for r in c.w if isv(r)}
            if pk == 'valu':
                pw = {r for r in p.w if isv(r)}
                psw = {r for r in p.w if not isv(r)}
                if ck == 'mfma' and pw & cv_r:
                    req = max(req, 2)
                if ck == 'valu' and c.dpp and pw & cv_r:
                    req = max(req, 2)
                if ck == 'valu' and c.op.startswith('v_permlane') and pw & cv_r:
                    req = max(req, 2)
                if ck == 'valu' and c.op.startswith(('v_readlane', 'v_readfirstlane')) and pw & cv_r:
                    req = max(req, 1)
                if p.op.startswith(TRANS) and ck in ('valu', 'mfma', 'vmem', 'ds') and pw & cv_r:
                    req = max(req, 1)
                if psw:
                    if ck == 'valu' and psw & c.r:
                        req = max(req, 4 if c.op.startswith(('v_readlane', 'v_writelane')) else 2)
                    if ck == 'vmem' and psw & c.r:
                        req = max(req, 5)
                    if ck == 'salu' and psw & c.r:
                        req = max(req, 1)
            elif pk == 'mfma':
                if ck == 'mfma':
                    if p.w & c.cc:
                        if p.w != c.cc:
                            req = max(req, 6)
                    ab = c.r - c.cc
                    if p.w & ab:
                        req = max(req, 8)
                    if p.w & c.w and not (p.w == c.cc and c.w == c.cc):
                        req = max(req, 8)
                elif ck in ('valu', 'vmem', 'ds'):
                    if p.w & (cv_r | cv_w):
                        req = max(req, 8)
                    if ck == 'valu' and p.cc & cv_w:
                        req = max(req, 3)
            elif pk == 'salu':
                if ('m0', 0) in p.w and c.lds_dma:
                    req = max(req, 1)
            elif pk == 'vmem':
                if p.wide_store and p.cc & cv_w:
                    req = max(req, 2 if ck == 'valu' else 1)
            miss = max(miss, req - dist)
            dist += p.states
            if dist >= 12:
                break
        return miss

    def push(self, ins):
        self.lines.append('    ' + ins.text)
        self.hist.append(ins)
        if len(self.hist) > 24:
            self.hist.pop(0)

    def nop(self, n):
        while n > 0:
            k = min(n, 16)
            self.push(parse(f's_nop {k - 1}'))
            self.nops += k
            n -= k

    def I(self, text):
        for t in text.split('\n'):
            t = t.strip()
            if not t:
                continue
            ins = parse(t)
            m = self.need(ins)
            if m > 0:
                self.nop(m)
            if ins.op.startswith(('s_cbranch', 's_branch', 's_setpc', 's_swappc')):
                self.flush()
            self.push(ins)

    def flush(self):
        miss, dist = 0, 0
        for p in reversed(self.hist):
            req = 0
            if p.kind == 'mfma':
                req = 8
            elif p.kind == 'valu':
                req = 5 if any(not isv(r) for r in p.w) else 2
            elif p.kind == 'vmem' and p.wide_store:
                req = 2
            elif p.kind == 'salu' and ('m0', 0) in p.w:
                req = 1
            miss = max(miss, req - dist)
            dist += p.states
            if dist >= 12:
                break
        if miss > 0:
            self.nop(miss)

    def label(self, name):
        self.flush()
        self.lines.append(name + ':')

    def c(self, text):
        self.lines.append('    ; ' + text)

    def vm_issue(self, text, tag=None, cond=False):
        self.I(text)
        self.vm.append((tag, cond))

    def vm_pending(self):
        return len(self.vm) - self.vm_done

    def vm_wait(self, *tags):
        idx = -1
        for n, (t, cond) in enumerate(self.vm):
            if t in tags:
                idx = n
        assert idx >= 0, f'unknown vm tag {tags}'
        if idx < self.vm_done:
            return
        n_after = sum(1 for (t, cond) in self.vm[idx + 1:] if not cond)
        assert n_after <= 63
        self.I(f's_waitcnt vmcnt({n_after})')
        self.vm_done = idx + 1

    def vm_throttle(self, f):
        if self.vm_pending() >= f:
            self.I(f's_waitcnt vmcnt({f - 1})')
            k, n = 0, len(self.vm)
            while n > 0 and k < f - 1:
                n -= 1
                k += 1
            nb = len(self.vm)
            k = 0
            while nb > 0 and k < f - 1:
                nb -= 1
                if not self.vm[nb][1]:
                    k += 1
            self.vm_done = max(self.vm_done, nb)

    def vm_all(self):
        self.I('s_waitcnt vmcnt(0)')
        self.vm_done = len(self.vm)

    def vm_reset(self):
        self.vm_done = len(self.vm)

    def text(self):
        return '\n'.join(self.lines) + '\n'
```

```python
import sys, math, struct
from asmlib import Asm

NAME = 'interleave_layers__mha_block_cached__glu_gated_reglu__decode_kernel'

WSTG = 12288
MB = 49152
MAXB = MB + 3072
LB = MB + 3072 + 64
JUNK = MB + 3072 + 128
VLDS = 53248
NVL = 27
NVR = 16
NRES = NVL + NVR
NN = 96 - NRES
LDS_BYTES = 163840

MQ, MO, MY, MH, MX, LSTR = 0x0, 0x8000, 0x28000, 0x2E000, 0x32000, 0x40000
WS_BYTES = 0x80000
TSOFF = 0x80000

S_K, S_V, S_WS, S_WQ, S_WO, S_WG, S_WU, S_WD, S_X, S_OUT, S_DBG = (f's[{r}:{r+3}]' for r in range(4, 48, 4))
sW = 's3'
sKV, sT, sXCD, sIDX, sHG, sJ, sH, sB, sSP = 's52', 's53', 's54', 's55', 's56', 's57', 's58', 's59', 's60'
sL = 's61'
sN, sU, sD = 's63', 's64', 's65'
sSTG = 's66'
sVL = 's67'
sSPIN, sT2, sT3, sT4 = 's68', 's69', 's70', 's71'
sQ, sGU, sWO, sDN = 's72', 's73', 's74', 's75'
sMO = 's76'
sLIM = 's77'
sRET = 's[78:79]'
sE = 's[80:81]'
sTS = 's[82:83]'
sTSO = 's84'
sKO = 's85'
SPIN_LIMIT = 40000

SCALE = 192 ** -0.5 * math.log2(math.e)


def f32(x):
    return '0x%08x' % struct.unpack('<I', struct.pack('<f', x))[0]


def kslot(k):
    if k < 64:
        return f'a[{4*k}:{4*k+3}]'
    r = 64 + 4 * (k - 64)
    return f'v[{r}:{r+3}]'


def vreg_slot(s):
    r = 192 + 4 * s
    return f'v[{r}:{r+3}]'


def q4(r):
    return f'v[{r}:{r+3}]'


class Gen:
    def __init__(self, opt):
        self.o = opt
        self.a = Asm()
        self.nlab = 0
        self.nts = 0

    def lab(self, s):
        self.nlab += 1
        return f'L_{s}_{self.nlab}'

    def stamp(self, name):
        if not self.o.get('stamps'):
            return
        a = self.a
        k = self.nts
        self.nts += 1
        self.stamp_names = getattr(self, 'stamp_names', []) + [name]
        skip = self.lab('ts')
        a.I(f's_cmp_eq_u32 {sW}, 3')
        a.I(f's_cbranch_scc0 {skip}')
        a.I(f's_memrealtime {sTS}')
        a.I('s_waitcnt lgkmcnt(0)')
        a.I('v_mov_b32 v62, s82')
        a.I(f'v_mov_b32 v63, {sTSO}')
        a.I('s_mov_b64 exec, 1')
        a.vm_issue(f'buffer_store_dword v62, v63, s[88:91], 0 offen offset:{4*k}', tag='ts', cond=True)
        a.I('s_mov_b64 exec, -1')
        a.label(skip)

    def poll(self, name, loads, regs, execmask=None):
        a = self.a
        top, done = self.lab(name + '_poll'), self.lab(name + '_ok')
        a.I(f's_mov_b32 {sSPIN}, 0')
        a.label(top)
        if execmask:
            a.I(f's_mov_b32 exec_lo, {execmask[0]}')
            a.I(f's_mov_b32 exec_hi, {execmask[1]}')
        for l in loads:
            a.I(l)
        if execmask:
            a.I('s_mov_b64 exec, -1')
        a.I('s_waitcnt vmcnt(0)')
        self.sentinel_check(regs)
        a.I(f's_cbranch_vccz {done}')
        a.I(f's_add_u32 {sSPIN}, {sSPIN}, 1')
        a.I(f's_cmp_lt_u32 {sSPIN}, {sLIM}')
        a.I(f's_cbranch_scc1 {top}')
        a.I(f's_mov_b32 {sLIM}, 0')
        a.label(done)
        a.vm_reset()

    def sentinel_check(self, regs, tmp='v63'):
        a = self.a
        regs = list(regs)
        if len(regs) == 1:
            a.I(f'v_cmp_eq_u32 vcc, -1, v{regs[0]}')
            return
        if len(regs) == 2:
            a.I(f'v_max_u32 {tmp}, v{regs[0]}, v{regs[1]}')
            regs = []
        else:
            a.I(f'v_max3_u32 {tmp}, v{regs[0]}, v{regs[1]}, v{regs[2]}')
            regs = regs[3:]
        while len(regs) >= 2:
            a.I(f'v_max3_u32 {tmp}, v{regs[0]}, v{regs[1]}, {tmp}')
            regs = regs[2:]
        if regs:
            a.I(f'v_max_u32 {tmp}, v{regs[0]}, {tmp}')
        a.I(f'v_cmp_eq_u32 vcc, -1, {tmp}')

    def prologue(self):
        a = self.a
        a.I('s_cmp_ge_u32 s2, 256')
        a.I('s_cbranch_scc1 L_end')
        a.I('s_load_dwordx16 s[64:79], s[0:1], 0')
        a.I('s_load_dwordx8 s[80:87], s[0:1], 64')
        a.I('v_lshrrev_b32 v1, 6, v0')
        a.I('v_and_b32 v0, 63, v0')
        a.I(f'v_readfirstlane_b32 {sW}, v1')
        a.I(f's_and_b32 {sXCD}, s2, 7')
        a.I(f's_lshr_b32 {sIDX}, s2, 3')
        a.I(f's_lshr_b32 {sHG}, {sIDX}, 3')
        a.I(f's_and_b32 {sJ}, {sIDX}, 7')
        a.I(f's_lshl_b32 {sH}, {sXCD}, 2')
        a.I(f's_add_u32 {sH}, {sH}, {sHG}')
        a.I(f's_lshr_b32 {sB}, {sJ}, 2')
        a.I(f's_and_b32 {sSP}, {sJ}, 3')
        a.I('s_waitcnt lgkmcnt(0)')
        srds = [(4, 66, 100663296), (8, 68, 100663296), (12, 86, WS_BYTES), (16, 70, 7864320), (20, 72, 7864320),
                (24, 76, 1966080), (28, 78, 1966080), (32, 80, 1966080), (36, 64, 2560), (40, 82, 2560), (44, 84, 256)]
        for (d, p, n) in srds:
            a.I(f's_mov_b32 s{d}, s{p}')
            a.I(f's_mov_b32 s{d+1}, s{p+1}')
            a.I(f's_mov_b32 s{d+2}, {n}')
            a.I(f's_mov_b32 s{d+3}, 0x20000')
        if self.o.get('stamps'):
            a.I('s_mov_b32 s88, s86')
            a.I('s_mov_b32 s89, s87')
            a.I(f's_mov_b32 s90, {TSOFF + 256*256}')
            a.I('s_mov_b32 s91, 0x20000')
            a.I(f's_lshl_b32 {sTSO}, s2, 8')
            a.I(f's_add_u32 {sTSO}, {sTSO}, {TSOFF}')
        a.I(f's_cmp_lt_u32 {sJ}, 6')
        a.I(f's_cselect_b32 {sQ}, 1, 0')
        a.I(f's_cselect_b32 s18, 7864320, 0')
        a.I(f's_cmp_lt_u32 {sJ}, 3')
        a.I(f's_cselect_b32 {sGU}, 1, 0')
        a.I(f's_cselect_b32 {sWO}, 0, 1')
        a.I(f's_cselect_b32 s22, 0, 7864320')
        a.I(f's_mul_i32 {sN}, {sHG}, 5')
        a.I(f's_add_u32 {sN}, {sN}, {sJ}')
        a.I(f's_sub_u32 {sN}, {sN}, 3')
        a.I(f's_mul_i32 {sU}, {sXCD}, 12')
        a.I(f's_mul_i32 {sT}, {sHG}, 3')
        a.I(f's_add_u32 {sU}, {sU}, {sT}')
        a.I(f's_add_u32 {sU}, {sU}, {sJ}')
        a.I(f's_cmp_eq_u32 {sJ}, 7')
        a.I(f's_cselect_b32 {sDN}, 1, 0')
        a.I(f's_cselect_b32 {sT}, {sHG}, 4')
        a.I(f's_cmp_eq_u32 {sIDX}, 6')
        a.I(f's_cselect_b32 {sDN}, 1, {sDN}')
        a.I(f's_mul_i32 {sD}, {sXCD}, 5')
        a.I(f's_add_u32 {sD}, {sD}, {sT}')
        a.I(f's_lshl_b32 {sT}, {sB}, 5')
        a.I(f's_add_u32 {sT}, {sT}, {sH}')
        a.I(f's_lshl_b32 {sT}, {sT}, 2')
        a.I(f's_add_u32 {sT}, {sT}, {sSP}')
        a.I(f's_lshl_b32 {sT}, {sT}, 2')
        a.I(f's_add_u32 {sT}, {sT}, {sW}')
        a.I(f's_mul_i32 {sKV}, {sT}, 98304')
        a.I(f's_lshl_b32 {sT}, {sH}, 1')
        a.I(f's_add_u32 {sT}, {sT}, {sB}')
        a.I(f's_lshl_b32 {sT}, {sT}, 2')
        a.I(f's_add_u32 {sT}, {sT}, {sSP}')
        a.I(f's_lshl_b32 {sT}, {sT}, 9')
        a.I(f's_add_u32 {sMO}, {sT}, {MO}')
        a.I(f's_mul_i32 {sSTG}, {sW}, {WSTG}')
        a.I(f's_mul_i32 {sVL}, {sW}, {NVL*1024}')
        a.I(f's_add_u32 {sVL}, {sVL}, {VLDS}')
        a.I(f's_mov_b32 {sL}, 0')
        a.I(f's_mov_b32 {sLIM}, {SPIN_LIMIT}')

    def clear_mail(self):
        a = self.a
        skip = self.lab('noclr')
        a.I(f's_cmp_eq_u32 {sW}, 3')
        a.I(f's_cbranch_scc0 {skip}')
        for r in range(4, 8):
            a.I(f'v_mov_b32 v{r}, -1')
        a.I('v_lshrrev_b32 v1, 3, v0')
        a.I('v_and_b32 v2, 7, v0')
        a.I('v_lshlrev_b32 v2, 4, v2')
        a.I('v_and_b32 v3, 3, v1')
        a.I('v_lshl_add_u32 v3, v3, 7, v2')
        a.I('v_lshrrev_b32 v8, 2, v1')
        a.I(f'v_lshl_add_u32 v3, v8, 18, v3')
        a.I(f'buffer_store_dwordx4 v[4:7], v3, {S_WS}, {sMO} offen sc1')
        OOB = 0x100000
        a.I(f's_mul_i32 {sT}, {sH}, 6')
        a.I(f's_add_u32 {sT}, {sT}, {sJ}')
        a.I(f's_lshl_b32 {sT}, {sT}, 7')
        a.I(f's_add_u32 {sT}, {sT}, {MQ}')
        a.I(f's_cmp_eq_u32 {sQ}, 1')
        a.I(f's_cselect_b32 {sT}, {sT}, {OOB}')
        a.I(f's_mul_i32 {sT2}, {sXCD}, 20')
        a.I(f's_add_u32 {sT2}, {sT2}, {sN}')
        a.I(f's_lshl_b32 {sT2}, {sT2}, 7')
        a.I(f's_add_u32 {sT2}, {sT2}, {MY}')
        a.I(f's_lshl_b32 {sT3}, {sU}, 7')
        a.I(f's_add_u32 {sT3}, {sT3}, {MH}')
        a.I(f's_cmp_eq_u32 {sWO}, 1')
        a.I(f's_cselect_b32 {sT2}, {sT2}, {sT3}')
        a.I(f's_lshl_b32 {sT3}, {sD}, 7')
        a.I(f's_add_u32 {sT3}, {sT3}, {MX}')
        a.I(f's_cmp_eq_u32 {sDN}, 1')
        a.I(f's_cselect_b32 {sT3}, {sT3}, {OOB}')
        a.I(f'v_mov_b32 v3, {OOB}')
        a.I(f'v_mov_b32 v8, {sT}')
        a.I('v_cmp_gt_u32 vcc, 2, v1')
        a.I('v_cndmask_b32 v3, v3, v8, vcc')
        a.I(f'v_mov_b32 v8, {sT2}')
        a.I('v_lshrrev_b32 v9, 1, v1')
        a.I('v_cmp_eq_u32 vcc, 1, v9')
        a.I('v_cndmask_b32 v3, v3, v8, vcc')
        a.I(f'v_mov_b32 v8, {sT3}')
        a.I('v_cmp_eq_u32 vcc, 4, v1')
        a.I('v_cndmask_b32 v3, v3, v8, vcc')
        a.I('v_and_b32 v9, 1, v1')
        a.I('v_lshl_add_u32 v3, v9, 18, v3')
        a.I('v_add_u32 v3, v3, v2')
        a.I(f'buffer_store_dwordx4 v[4:7], v3, {S_WS}, 0 offen sc1')
        a.I('s_waitcnt vmcnt(0)')
        a.I('v_mov_b32 v4, 1')
        a.I('v_mov_b32 v5, 0')
        a.I('s_mov_b64 exec, 1')
        a.vm_issue(f'buffer_atomic_add v4, v5, {S_DBG}, 0 offen sc1', tag='ctr_add', cond=True)
        a.I('s_mov_b64 exec, -1')
        a.label(skip)

    def stage_wq(self, tag='wq'):
        a = self.a
        a.I('v_lshrrev_b32 v62, 2, v0')
        a.I('v_mul_u32_u24 v62, 12288, v62')
        a.I('v_and_b32 v63, 3, v0')
        a.I('v_lshl_add_u32 v62, v63, 4, v62')
        a.I(f's_mul_i32 {sT}, {sW}, {160*12288}')
        a.I(f's_mul_i32 {sT2}, {sH}, 384')
        a.I(f's_add_u32 {sT}, {sT}, {sT2}')
        a.I(f's_lshl_b32 {sT2}, {sJ}, 6')
        a.I(f's_add_u32 {sT}, {sT}, {sT2}')
        for t in range(10):
            a.I(f's_add_u32 m0, {sSTG}, {t*1024}')
            if t:
                a.I(f's_add_u32 {sT}, {sT}, {16*12288}')
            a.vm_issue(f'buffer_load_dwordx4 v62, {S_WQ}, {sT} offen{self.o["wpol"]} lds', tag=tag)

    def stage_wo(self, tag='wo', cond=False):
        a = self.a
        a.I('v_bfe_u32 v62, v0, 2, 2')
        a.I('v_lshlrev_b32 v62, 3, v62')
        a.I('v_lshrrev_b32 v63, 5, v0')
        a.I('v_lshl_add_u32 v62, v63, 1, v62')
        a.I('v_bfe_u32 v63, v0, 4, 1')
        a.I('v_add_u32 v62, v62, v63')
        a.I('v_mul_u32_u24 v62, 1280, v62')
        a.I('v_and_b32 v63, 3, v0')
        a.I('v_lshl_add_u32 v62, v63, 4, v62')
        a.I(f's_mul_i32 {sT}, {sXCD}, {768*1280}')
        a.I(f's_mul_i32 {sT2}, {sW}, {192*1280}')
        a.I(f's_add_u32 {sT}, {sT}, {sT2}')
        a.I(f's_lshl_b32 {sT2}, {sN}, 6')
        a.I(f's_add_u32 {sT}, {sT}, {sT2}')
        for t in range(12):
            off = (32 * (t >> 1) + 4 * (t & 1)) * 1280
            a.I(f's_add_u32 m0, {sSTG}, {t*1024}')
            a.I(f's_add_u32 {sT2}, {sT}, {off}')
            a.vm_issue(f'buffer_load_dwordx4 v62, {S_WO}, {sT2} offen{self.o["wpol"]} lds', tag=tag, cond=cond)

    def stage_gu(self):
        a = self.a
        a.I('v_lshrrev_b32 v62, 1, v0')
        a.I('v_mul_u32_u24 v62, 3072, v62')
        a.I('v_and_b32 v63, 1, v0')
        a.I('v_lshl_add_u32 v62, v63, 4, v62')
        a.I(f's_mul_i32 {sT}, {sW}, {160*3072}')
        a.I(f's_lshl_b32 {sT2}, {sU}, 5')
        a.I(f's_add_u32 {sT}, {sT}, {sT2}')
        for m, srd in enumerate((S_WG, S_WU)):
            for t in range(5):
                a.I(f's_add_u32 m0, {sSTG}, {m*5120 + t*1024}')
                a.I(f's_add_u32 {sT2}, {sT}, {t*32*3072}')
                a.vm_issue(f'buffer_load_dwordx4 v62, {srd}, {sT2} offen{self.o["wpol"]} lds', tag='gu', cond=True)

    def stage_dn(self):
        a = self.a
        a.I('v_lshrrev_b32 v62, 1, v0')
        a.I('v_mul_u32_u24 v62, 1280, v62')
        a.I('v_and_b32 v63, 1, v0')
        a.I('v_lshl_add_u32 v62, v63, 4, v62')
        a.I(f's_mul_i32 {sT}, {sW}, {384*1280}')
        a.I(f's_lshl_b32 {sT2}, {sD}, 5')
        a.I(f's_add_u32 {sT}, {sT}, {sT2}')
        for t in range(12):
            a.I(f's_add_u32 m0, {sSTG}, {t*1024}')
            a.I(f's_add_u32 {sT2}, {sT}, {t*32*1280}')
            a.vm_issue(f'buffer_load_dwordx4 v62, {S_WD}, {sT2} offen{self.o["wpol"]} lds', tag='dn', cond=True)

    def tr_addr(self, reg, rowbytes):
        a = self.a
        a.I(f'v_lshrrev_b32 {reg}, 4, v0')
        a.I(f'v_lshlrev_b32 {reg}, 3, {reg}')
        a.I(f'v_bfe_u32 v63, v0, 2, 2')
        a.I(f'v_add_u32 {reg}, {reg}, v63')
        a.I(f'v_mul_u32_u24 {reg}, {rowbytes}, {reg}')
        a.I(f'v_and_b32 v63, 3, v0')
        a.I(f'v_lshl_add_u32 {reg}, v63, 3, {reg}')
        a.I(f'v_add_u32 {reg}, {sSTG}, {reg}')

    def tr_read(self, dst, areg, off, rowbytes):
        a = self.a
        a.I(f'ds_read_b64_tr_b16 v[{dst}:{dst+1}], {areg} offset:{off}')
        a.I(f'ds_read_b64_tr_b16 v[{dst+2}:{dst+3}], {areg} offset:{off + 4*rowbytes}')

    def q_a_loads(self, layer):
        ld = []
        for kk in range(5):
            r = 12 + 4 * kk
            if layer == 0:
                ld.append(f'buffer_load_dwordx4 {q4(r)}, v1, {S_X}, {sT3} offen offset:{kk*64}')
            else:
                ld.append(f'buffer_load_dwordx4 {q4(r)}, v1, {S_WS}, {sT3} offen offset:{kk*256} sc1')
        return ld

    def q_a_setup(self, layer):
        a = self.a
        for r in range(12, 32):
            a.I(f'v_mov_b32 v{r}, 0x3f803f80')
        if layer == 0:
            a.I('v_and_b32 v1, 1, v0')
            a.I('v_mul_u32_u24 v1, 1280, v1')
            a.I('v_lshrrev_b32 v63, 4, v0')
            a.I('v_lshl_add_u32 v1, v63, 4, v1')
            a.I(f's_mul_i32 {sT3}, {sW}, 320')
        else:
            a.I('v_and_b32 v1, 1, v0')
            a.I('v_lshlrev_b32 v1, 5, v1')
            a.I('v_bfe_u32 v63, v0, 4, 1')
            a.I('v_lshl_add_u32 v1, v63, 4, v1')
            a.I('v_lshrrev_b32 v63, 5, v0')
            a.I('v_lshl_add_u32 v1, v63, 7, v1')
            a.I(f's_mul_i32 {sT3}, {sW}, 1280')
            a.I(f's_add_u32 {sT3}, {sT3}, {MX}')

    def q_compute(self):
        a = self.a
        self.tr_addr('v2', 64)
        sets = [(32, 36), (40, 44)]
        for kk in range(2):
            for tau in range(2):
                self.tr_read(sets[kk][tau], 'v2', kk * 2048 + tau * 32, 64)
        for kk in range(5):
            A = q4(12 + 4 * kk)
            b0, b1 = sets[kk & 1]
            a.I(f's_waitcnt lgkmcnt({4 if kk < 4 else 0})')
            c0 = '0' if kk == 0 else q4(48)
            c1 = '0' if kk == 0 else q4(52)
            c2 = '0' if kk == 0 else q4(56)
            a.I(f'v_mfma_f32_16x16x32_bf16 {q4(48)}, {A}, {q4(b0)}, {c0}')
            a.I(f'v_mfma_f32_16x16x32_bf16 {q4(52)}, {A}, {q4(b1)}, {c1}')
            a.I(f'v_mfma_f32_16x16x32_bf16 {q4(56)}, {A}, {A}, {c2}')
            if kk + 2 < 5:
                for tau in range(2):
                    self.tr_read(sets[kk & 1][tau], 'v2', (kk + 2) * 2048 + tau * 32, 64)
        a.I('v_and_b32 v3, 15, v0')
        a.I('v_lshlrev_b32 v3, 4, v3')
        a.I(f's_mul_i32 {sT}, {sW}, 768')
        a.I(f's_add_u32 {sT}, {sT}, {MB}')
        a.I(f'v_add_u32 v3, {sT}, v3')
        a.I('s_mov_b64 exec, 0xffff')
        for acc in range(3):
            a.I(f'ds_write_b128 v3, {q4(48 + 4*acc)} offset:{acc*256}')
        a.I('s_mov_b64 exec, -1')
        a.I('s_waitcnt lgkmcnt(0)')
        a.I('s_barrier')
        fin, join = self.lab('qfin'), self.lab('qjoin')
        a.I(f's_cmp_eq_u32 {sW}, 3')
        a.I(f's_cbranch_scc1 {fin}')
        a.I('s_barrier')
        a.I(f's_branch {join}')
        a.label(fin)
        a.I('v_and_b32 v1, 31, v0')
        a.I('v_bfe_u32 v2, v0, 4, 1')
        a.I('v_and_b32 v3, 15, v0')
        a.I('v_lshlrev_b32 v3, 4, v3')
        a.I('v_lshl_add_u32 v3, v2, 8, v3')
        a.I(f'v_add_u32 v3, {MB}, v3')
        a.I('v_lshrrev_b32 v4, 5, v0')
        a.I('v_lshl_add_u32 v5, v4, 2, v3')
        for w in range(4):
            a.I(f'ds_read_b32 v{12+w}, v5 offset:{w*768}')
            a.I(f'ds_read_b32 v{16+w}, v3 offset:{w*768 + 8}')
        a.I('v_and_b32 v6, 3, v0')
        a.I('v_mul_u32_u24 v6, 768, v6')
        a.I('v_lshl_add_u32 v6, v4, 2, v6')
        a.I(f'v_add_u32 v6, {MB + 512}, v6')
        a.I('v_lshl_add_u32 v7, v4, 4, v6')
        a.I('ds_read_b32 v20, v7')
        a.I('ds_read_b32 v21, v6 offset:32')
        a.I('s_waitcnt lgkmcnt(0)')
        a.I('s_barrier')
        a.I('v_add_f32 v12, v12, v13')
        a.I('v_add_f32 v14, v14, v15')
        a.I('v_add_f32 v16, v16, v17')
        a.I('v_add_f32 v18, v18, v19')
        a.I('v_add_f32_dpp v20, v20, v20 quad_perm:[1,0,3,2] row_mask:0xf bank_mask:0xf')
        a.I('v_add_f32_dpp v21, v21, v21 quad_perm:[1,0,3,2] row_mask:0xf bank_mask:0xf')
        a.I('v_add_f32 v12, v12, v14')
        a.I('v_add_f32 v16, v16, v18')
        a.I('v_add_f32_dpp v20, v20, v20 quad_perm:[2,3,0,1] row_mask:0xf bank_mask:0xf')
        a.I('v_add_f32_dpp v21, v21, v21 quad_perm:[2,3,0,1] row_mask:0xf bank_mask:0xf')
        self.ln_stats('v20', 'v21', 'v22', 'v23')
        a.I('v_fma_f32 v12, -v22, v16, v12')
        a.I('v_mul_f32 v12, v12, v23')
        a.I('v_mov_b32_dpp v13, v12 quad_perm:[1,0,3,2] row_mask:0xf bank_mask:0xf')
        a.I('v_cvt_pk_bf16_f32 v12, v12, v13')
        a.I('v_min_u32 v12, -2, v12')
        a.I('v_lshlrev_b32 v1, 1, v1')
        a.I('v_lshl_add_u32 v1, v4, 6, v1')
        a.I(f's_mul_i32 {sT}, {sH}, 6')
        a.I(f's_add_u32 {sT}, {sT}, {sJ}')
        a.I(f's_lshl_b32 {sT}, {sT}, 7')
        a.I(f's_add_u32 {sT}, {sT}, {sL}')
        if MQ:
            a.I(f's_add_u32 {sT}, {sT}, {MQ}')
        a.I('s_mov_b32 exec_lo, 0x55555555')
        a.I('s_mov_b32 exec_hi, 0x55555555')
        a.vm_issue(f'buffer_store_dword v12, v1, {S_WS}, {sT} offen sc1', tag='qpub', cond=True)
        a.I('s_mov_b64 exec, -1')
        a.label(join)

    def ln_stats(self, sumsq, summ, mean, rstd):
        a = self.a
        a.I(f'v_mul_f32 {mean}, {f32(1/640)}, {summ}')
        a.I(f'v_mul_f32 {rstd}, {f32(1/640)}, {sumsq}')
        a.I(f'v_fma_f32 {rstd}, -{mean}, {mean}, {rstd}')
        a.I(f'v_max_f32 {rstd}, 0, {rstd}')
        a.I(f'v_add_f32 {rstd}, {f32(1e-5)}, {rstd}')
        a.I(f'v_rsq_f32 {rstd}, {rstd}')

    def att_setup(self):
        a = self.a
        a.I('v_and_b32 v1, 7, v0')
        a.I('v_mul_u32_u24 v1, 384, v1')
        a.I('v_bfe_u32 v63, v0, 3, 1')
        a.I('v_lshl_add_u32 v1, v63, 6, v1')
        a.I('v_lshrrev_b32 v62, 4, v0')
        a.I('v_lshl_add_u32 v1, v62, 4, v1')
        a.I('v_lshl_add_u32 v2, v63, 2, v62')
        a.I('v_lshlrev_b32 v4, 2, v2')
        a.I('v_mul_u32_u24 v2, 384, v2')
        a.I('v_and_b32 v63, 7, v0')
        a.I('v_lshl_add_u32 v2, v63, 4, v2')
        a.I('v_lshlrev_b32 v3, 4, v0')
        a.I(f'v_add_u32 v3, {sVL}, v3')
        a.I('v_and_b32 v62, 1, v0')
        a.I('v_mov_b32 v9, 0xffff')
        a.I('v_lshlrev_b32 v62, 4, v62')
        a.I('v_lshlrev_b32 v9, v62, v9')
        a.I('v_bfe_u32 v63, v0, 1, 2')
        for r in range(4):
            a.I(f'v_cmp_eq_u32 vcc, {r}, v63')
            a.I(f'v_cndmask_b32 v{5+r}, 0, v9, vcc')

    def q_operand_loads(self):
        return [f'buffer_load_dwordx4 {q4(12+4*c)}, v10, {S_WS}, {sT3} offen offset:{c*256} sc1' for c in range(3)]

    def q_operand_setup(self):
        a = self.a
        a.I('v_and_b32 v10, 1, v0')
        a.I('v_lshlrev_b32 v10, 7, v10')
        a.I('v_lshrrev_b32 v63, 4, v0')
        a.I('v_lshl_add_u32 v10, v63, 4, v10')
        a.I(f's_mul_i32 {sT3}, {sH}, 768')
        a.I(f's_lshl_b32 {sT2}, {sB}, 6')
        a.I(f's_add_u32 {sT3}, {sT3}, {sT2}')
        a.I(f's_add_u32 {sT3}, {sT3}, {sL}')
        if MQ:
            a.I(f's_add_u32 {sT3}, {sT3}, {MQ}')

    def kload(self, k):
        a = self.a
        T, c = divmod(k, 3)
        if c == 0:
            a.I(f's_add_u32 {sKO}, {sKV}, {T*3072}')
        a.vm_issue(f'buffer_load_dwordx4 {kslot(k)}, v1, {S_K}, {sKO} offen offset:{c*128}{self.o["kvpol"]}', tag=('K', k))

    def vload(self, n, dest, pol=None):
        a = self.a
        pol = self.o['kvpol'] if pol is None else pol
        T, c = divmod(n, 3)
        if self._vT != T:
            a.I(f's_add_u32 {sT4}, {sKV}, {T*3072}')
            self._vT = T
        if dest[0] == 'r':
            a.vm_issue(f'buffer_load_dwordx4 {dest[1]}, v2, {S_V}, {sT4} offen offset:{c*128}{pol}', tag=('V', n))
        else:
            a.I(f's_add_u32 m0, {sVL}, {(dest[1]*1024 - c*128) & 0xffffffff}')
            a.vm_issue(f'buffer_load_dwordx4 v2, {S_V}, {sT4} offen offset:{c*128}{pol} lds', tag=('V', n))

    @staticmethod
    def ring(n):
        s = n % NRES
        return ('r', vreg_slot(s)) if s < NVR else ('l', s - NVR)

    def qk(self, hook):
        a = self.a
        accs = [24, 28, 52]

        def fold(T):
            D = accs[T % 3]
            rho, t8 = divmod(T, 8)
            G, par = divmod(t8, 2)
            if par == 0:
                a.I(f'v_add_f32_dpp v{32+rho}, v{D+1}, v{D} row_ror:8 row_mask:{hex(1 << G)} bank_mask:0x3')
            else:
                a.I(f'v_add_f32_dpp v{32+rho}, v{D}, v{D+1} row_ror:8 row_mask:{hex(1 << G)} bank_mask:0xc')
        for T in range(32):
            D = q4(accs[T % 3])
            for c in range(3):
                a.I(f'v_mfma_f32_16x16x32_bf16 {D}, {q4(12+4*c)}, {kslot(3*T+c)}, {"0" if c == 0 else D}')
            hook(T)
            if T >= 2:
                fold(T - 2)
        fold(30)
        fold(31)

    def softmax(self):
        a = self.a
        a.I('v_max3_f32 v62, v32, v33, v34')
        a.I('v_max_f32 v62, v62, v35')
        for sh in (8, 4, 2, 1):
            a.I(f'v_max_f32_dpp v62, v62, v62 row_ror:{sh} row_mask:0xf bank_mask:0xf')
        a.I('v_lshrrev_b32 v63, 4, v0')
        a.I(f's_lshl_b32 {sT}, {sW}, 4')
        a.I(f's_add_u32 {sT}, {sT}, {MAXB}')
        a.I('v_lshlrev_b32 v63, 2, v63')
        a.I(f'v_add_u32 v9, {sT}, v63')
        a.I('ds_write_b32 v9, v62')
        a.I('s_waitcnt lgkmcnt(0)')
        a.I('s_barrier')
        a.I(f'v_mov_b32 v63, {MAXB}')
        for w in range(4):
            a.I(f'ds_read_b128 {q4(12+4*w)}, v63 offset:{w*16}')
        a.I('s_waitcnt lgkmcnt(0)')
        a.I('v_max3_f32 v62, v12, v13, v14')
        for r in range(15, 27, 2):
            a.I(f'v_max3_f32 v62, v62, v{r}, v{r+1}')
        a.I('v_max_f32 v62, v62, v27')
        a.I(f's_mov_b32 {sT}, {f32(SCALE)}')
        a.I(f'v_mul_f32 v11, {sT}, v62')
        for r in range(4):
            a.I(f'v_fma_f32 v{32+r}, v{32+r}, {sT}, -v11')
        for r in range(4):
            a.I(f'v_exp_f32 v{32+r}, v{32+r}')
        for r in range(4):
            a.I(f'v_cvt_pk_bf16_f32 v{36+r}, v{32+r}, v{32+r}')
        a.I('v_add_f32 v62, v32, v33')
        a.I('v_add_f32 v63, v34, v35')
        a.I('v_add_f32 v62, v62, v63')
        for sh in (8, 4, 2, 1):
            a.I(f'v_add_f32_dpp v62, v62, v62 row_ror:{sh} row_mask:0xf bank_mask:0xf')
        a.I(f'ds_write_b32 v9, v62 offset:{LB - MAXB}')

    def pv(self, order, where, after):
        a = self.a
        tsets = [12, 24]
        bsets = [52, 56]
        xs = [60, 61]
        first = True

        def need(n):
            idx = [k for k, (t, _) in enumerate(a.vm) if t == ('V', n)]
            if idx and idx[-1] >= a.vm_done:
                a.vm_wait(('V', n))

        def fetch(i):
            T = order[i]
            a.I(f'ds_bpermute_b32 v{xs[i & 1]}, v4, v{36 + (T >> 3)} offset:{32*(T & 7)}')
            for c in range(3):
                w = where(3 * T + c)
                if w[0] == 'l':
                    need(3 * T + c)
                    r = tsets[i & 1] + 4 * c
                    a.I(f'ds_read_b128 {q4(r)}, v3 offset:{w[1]*1024}')
        fetch(0)
        for i, T in enumerate(order):
            a.I('s_waitcnt lgkmcnt(0)')
            B = bsets[i & 1]
            for r in range(4):
                a.I(f'v_and_b32 v{B+r}, v{xs[i & 1]}, v{5+r}')
            if i + 1 < len(order):
                fetch(i + 1)
            for c in range(3):
                w = where(3 * T + c)
                if w[0] == 'r':
                    need(3 * T + c)
                    A = w[1]
                else:
                    A = q4(tsets[i & 1] + 4 * c)
                D = q4(40 + 4 * c)
                a.I(f'v_mfma_f32_16x16x32_bf16 {D}, {A}, {q4(B)}, {"0" if first else D}')
            first = False
            after(T)

    def att_publish(self):
        a = self.a
        for r in range(12):
            a.I(f'v_permlane32_swap_b32 v{40+r}, v{12+r}')
        for r in range(12):
            a.I(f'v_add_f32_dpp v{40+r}, v{12+r}, v{40+r} row_ror:8 row_mask:0xf bank_mask:0xf')
        a.I('v_lshrrev_b32 v62, 4, v0')
        a.I('v_and_b32 v63, 7, v0')
        a.I('v_lshl_add_u32 v62, v62, 3, v63')
        a.I('v_lshlrev_b32 v62, 4, v62')
        a.I(f's_mul_i32 {sT}, {sW}, 768')
        a.I(f's_add_u32 {sT}, {sT}, {MB}')
        a.I(f'v_add_u32 v62, {sT}, v62')
        a.I('s_mov_b32 exec_lo, 0x00ff00ff')
        a.I('s_mov_b32 exec_hi, 0')
        for c in range(3):
            a.I(f'ds_write_b128 v62, {q4(40+4*c)} offset:{c*256}')
        a.I('s_mov_b64 exec, -1')
        a.I('s_waitcnt lgkmcnt(0)')
        a.I('s_barrier')
        fin, join = self.lab('afin'), self.lab('ajoin')
        a.I(f's_cmp_eq_u32 {sW}, 3')
        a.I(f's_cbranch_scc1 {fin}')
        a.I('s_barrier')
        a.I(f's_branch {join}')
        a.label(fin)
        a.I('v_min_u32 v62, 47, v0')
        a.I('v_lshlrev_b32 v62, 4, v62')
        a.I(f'v_add_u32 v62, {MB}, v62')
        for w in range(4):
            a.I(f'ds_read_b128 {q4(12+4*w)}, v62 offset:{w*768}')
        a.I(f'v_mov_b32 v63, {LB}')
        for w in range(4):
            a.I(f'ds_read_b128 {q4(28+4*w)}, v63 offset:{w*16}')
        a.I('s_waitcnt lgkmcnt(0)')
        a.I('s_barrier')
        for r in range(4):
            a.I(f'v_add_f32 v{12+r}, v{12+r}, v{16+r}')
            a.I(f'v_add_f32 v{20+r}, v{20+r}, v{24+r}')
        for r in range(4):
            a.I(f'v_add_f32 v{28+r}, v{28+r}, v{32+r}')
            a.I(f'v_add_f32 v{36+r}, v{36+r}, v{40+r}')
        for r in range(4):
            a.I(f'v_add_f32 v{12+r}, v{12+r}, v{20+r}')
            a.I(f'v_add_f32 v{28+r}, v{28+r}, v{36+r}')
        a.I('v_add_f32 v28, v28, v29')
        a.I('v_add_f32 v30, v30, v31')
        a.I('v_cvt_pk_bf16_f32 v12, v12, v13')
        a.I('v_cvt_pk_bf16_f32 v13, v14, v15')
        a.I('v_add_f32 v28, v28, v30')
        a.I('v_cmp_eq_u32 vcc, 48, v0')
        a.I('v_cndmask_b32 v12, v12, v11, vcc')
        a.I('v_cndmask_b32 v13, v13, v28, vcc')
        a.I('v_min_u32 v12, -2, v12')
        a.I('v_min_u32 v13, -2, v13')
        a.I('v_lshlrev_b32 v62, 3, v0')
        a.I(f's_add_u32 {sT}, {sMO}, {sL}')
        a.I('s_mov_b32 exec_lo, -1')
        a.I('s_mov_b32 exec_hi, 0x1ffff')
        a.vm_issue(f'buffer_store_dwordx2 v[12:13], v62, {S_WS}, {sT} offen sc1', tag='opub', cond=True)
        a.I('s_mov_b64 exec, -1')
        a.label(join)

    def pass1(self):
        a = self.a
        o = self.o
        F = o['F']
        self._vT = None
        self.q_a_setup(0)
        a.I('s_mov_b32 exec_lo, 0x33333333')
        a.I('s_mov_b32 exec_hi, 0x33333333')
        for l in self.q_a_loads(0):
            a.vm_issue(l, tag='xa')
        a.I('s_mov_b64 exec, -1')
        self.stage_wq()
        self.att_setup()
        for k in range(16):
            self.kload(k)
        a.vm_wait('xa', 'wq')
        self.stamp('wq_landed')
        skip = self.lab('noq')
        a.I(f's_cmp_eq_u32 {sQ}, 1')
        a.I(f's_cbranch_scc0 {skip}')
        self.q_compute()
        a.label(skip)
        self.stamp('q_pub')
        self.att_setup()
        for k in range(16, 40):
            a.vm_throttle(F)
            self.kload(k)
        a.I('v_mov_b32 v10, 0')
        a.vm_issue(f'buffer_load_dword v9, v10, {S_DBG}, 0 offen sc1', tag='ctr')
        for k in range(40, 56):
            a.vm_throttle(F)
            self.kload(k)
        a.vm_wait('ctr')
        ok = self.lab('ctr_ok')
        top = self.lab('ctr_spin')
        a.I('v_cmp_gt_u32 vcc, 256, v9')
        a.I(f's_cbranch_vccz {ok}')
        a.I(f's_mov_b32 {sSPIN}, 0')
        a.label(top)
        a.I(f'buffer_load_dword v9, v10, {S_DBG}, 0 offen sc1')
        a.I('s_waitcnt vmcnt(0)')
        a.I('v_cmp_gt_u32 vcc, 256, v9')
        a.I(f's_cbranch_vccz {ok}')
        a.I(f's_add_u32 {sSPIN}, {sSPIN}, 1')
        a.I(f's_cmp_lt_u32 {sSPIN}, {sLIM}')
        a.I(f's_cbranch_scc1 {top}')
        a.I(f's_mov_b32 {sLIM}, 0')
        a.label(ok)
        self.q_operand_setup()
        for l in self.q_operand_loads():
            a.vm_issue(l, tag='qop')
        for k in range(56, 96):
            a.vm_throttle(F)
            self.kload(k)
        nv = 0
        for n in range(12):
            a.vm_throttle(F)
            self.vload(n, self.ring(n))
        a.vm_wait('qop')
        ok = self.lab('q_ok')
        self.sentinel_check(range(12, 24))
        a.I(f's_cbranch_vccz {ok}')
        self.q_operand_setup()
        self.poll('q1', self.q_operand_loads(), range(12, 24))
        a.vm_done = 0
        a.label(ok)
        a.vm_done = max(k for k, (t, _) in enumerate(a.vm) if t == 'qop') + 1
        a.vm_wait(('K', 95))
        self.stamp('K_landed')
        nxt = [12]

        def hook(T):
            if nxt[0] < NRES:
                self.vload(nxt[0], self.ring(nxt[0]))
                nxt[0] += 1
        self.qk(hook)
        while nxt[0] < NRES:
            self.vload(nxt[0], self.ring(nxt[0]))
            nxt[0] += 1
        self.softmax()
        self.stamp('softmax1')

        def after(T):
            for c in range(3):
                n = 3 * T + c + NRES
                if n < 96:
                    self.vload(n, self.ring(n))
            if 3 * T + 2 + NRES >= 95 and not getattr(self, '_wo1', False):
                self._wo1 = True
                self.stage_wo(tag='wo1')
        self.pv(list(range(32)), self.ring, after)
        self.stamp('pv1')
        self.att_publish()
        self.stamp('o_pub1')

    def pass2(self):
        a = self.a
        self._vT = None
        self.att_setup()
        self.q_operand_setup()
        self.poll('q2', self.q_operand_loads(), range(12, 24))
        self.stamp('q2_in')

        def hook(T):
            for c in range(3):
                n = 3 * T + c
                if n < NN:
                    self.vload(n, ('r', kslot(n)), pol=self.o['npol'])
        self.qk(hook)
        self.softmax()
        self.stamp('softmax2')
        done = []

        def after(T):
            if not done:
                done.append(1)
                a.vm_wait(('V', 1))
                self.stage_wo(tag='wo2')

        def where(n):
            return ('r', kslot(n)) if n < NN else self.ring(n)
        order = list(range(18, 32)) + list(range(18))
        self.pv(order, where, after)
        self.stamp('pv2')
        self.att_publish()
        self.stamp('o_pub2')

    def wo_phase(self):
        a = self.a
        a.I('v_bfe_u32 v1, v0, 2, 1')
        a.I('v_lshlrev_b32 v1, 11, v1')
        a.I('v_and_b32 v63, 3, v0')
        a.I('v_lshl_add_u32 v1, v63, 9, v1')
        a.I('v_lshrrev_b32 v62, 4, v0')
        a.I('v_lshl_add_u32 v1, v62, 4, v1')
        a.I('v_and_b32 v3, 1, v62')
        a.I('v_lshlrev_b32 v3, 11, v3')
        a.I('v_lshl_add_u32 v3, v63, 9, v3')
        a.I(f's_lshl_b32 {sT3}, {sXCD}, 2')
        a.I(f's_add_u32 {sT3}, {sT3}, {sW}')
        a.I(f's_lshl_b32 {sT3}, {sT3}, 12')
        a.I(f's_add_u32 {sT3}, {sT3}, {MO}')
        a.I(f's_add_u32 {sT3}, {sT3}, {sL}')
        self.tr_addr('v2', 64)
        loads = [f'buffer_load_dwordx4 {q4(12+4*k)}, v1, {S_WS}, {sT3} offen offset:{k*64} sc1' for k in range(6)]
        loads.append(f'buffer_load_dwordx2 v[36:37], v3, {S_WS}, {sT3} offen offset:384 sc1')
        a.vm_all()
        sets = [(40, 44), (48, 52)]
        for kk in range(2):
            for tau in range(2):
                self.tr_read(sets[kk][tau], 'v2', kk * 2048 + tau * 32, 64)
        self.poll('o', loads, range(12, 38))
        self.stamp('wo_in')
        a.I('v_max_f32_dpp v4, v36, v36 quad_perm:[1,0,3,2] row_mask:0xf bank_mask:0xf')
        a.I('v_max_f32_dpp v4, v4, v4 quad_perm:[2,3,0,1] row_mask:0xf bank_mask:0xf')
        a.I('v_sub_f32 v4, v36, v4')
        a.I('v_exp_f32 v4, v4')
        a.I('v_mul_f32 v5, v4, v37')
        a.I('v_add_f32_dpp v5, v5, v5 quad_perm:[1,0,3,2] row_mask:0xf bank_mask:0xf')
        a.I('v_add_f32_dpp v5, v5, v5 quad_perm:[2,3,0,1] row_mask:0xf bank_mask:0xf')
        a.I('v_rcp_f32 v5, v5')
        a.I('v_mul_f32 v4, v4, v5')
        for kk in range(6):
            A = q4(12 + 4 * kk)
            b0, b1 = sets[kk & 1]
            a.I(f's_waitcnt lgkmcnt({4 if kk < 5 else 0})')
            a.I(f'v_mfma_f32_16x16x32_bf16 {q4(56)}, {A}, {q4(b0)}, {"0" if kk == 0 else q4(56)}')
            a.I(f'v_mfma_f32_16x16x32_bf16 {q4(60)}, {A}, {q4(b1)}, {"0" if kk == 0 else q4(60)}')
            if kk + 2 < 6:
                for tau in range(2):
                    self.tr_read(sets[kk & 1][tau], 'v2', (kk + 2) * 2048 + tau * 32, 64)
        for tau in range(2):
            D = 56 + 4 * tau
            a.I(f'v_mul_f32_dpp v{6+tau}, v4, v{D} quad_perm:[0,0,0,0] row_mask:0xf bank_mask:0xf')
            for r in range(1, 4):
                a.I(f'v_fmac_f32_dpp v{6+tau}, v4, v{D+r} quad_perm:[{r},{r},{r},{r}] row_mask:0xf bank_mask:0xf')
        a.I('v_bfe_u32 v1, v0, 4, 1')
        a.I('v_lshlrev_b32 v1, 6, v1')
        a.I('v_and_b32 v63, 15, v0')
        a.I('v_lshl_add_u32 v1, v63, 2, v1')
        a.I(f's_lshl_b32 {sT}, {sW}, 8')
        a.I(f's_add_u32 {sT}, {sT}, {MB}')
        a.I(f'v_add_u32 v1, {sT}, v1')
        a.I('ds_write_b32 v1, v6')
        a.I('ds_write_b32 v1, v7 offset:128')
        a.I('s_waitcnt lgkmcnt(0)')
        a.I('s_barrier')
        fin, join = self.lab('wfin'), self.lab('wjoin')
        a.I(f's_cmp_eq_u32 {sW}, 3')
        a.I(f's_cbranch_scc1 {fin}')
        a.I('s_barrier')
        a.I(f's_branch {join}')
        a.label(fin)
        a.I('v_lshrrev_b32 v4, 5, v0')
        a.I('v_bfe_u32 v2, v0, 4, 1')
        a.I('v_lshlrev_b32 v2, 7, v2')
        a.I('v_lshl_add_u32 v2, v4, 6, v2')
        a.I('v_and_b32 v63, 15, v0')
        a.I('v_lshl_add_u32 v2, v63, 2, v2')
        a.I(f'v_add_u32 v2, {MB}, v2')
        for w in range(4):
            a.I(f'ds_read_b32 v{12+w}, v2 offset:{w*256}')
        a.I('s_waitcnt lgkmcnt(0)')
        a.I('s_barrier')
        a.I('v_add_f32 v12, v12, v13')
        a.I('v_add_f32 v14, v14, v15')
        a.I('v_add_f32 v12, v12, v14')
        a.I('v_add_f32 v12, v12, v38')
        a.I('v_mov_b32_dpp v13, v12 quad_perm:[1,0,3,2] row_mask:0xf bank_mask:0xf')
        a.I('v_cvt_pk_bf16_f32 v12, v12, v13')
        a.I('v_min_u32 v12, -2, v12')
        a.I('v_and_b32 v1, 31, v0')
        a.I('v_lshlrev_b32 v1, 1, v1')
        a.I('v_lshl_add_u32 v1, v4, 6, v1')
        a.I(f's_mul_i32 {sT}, {sXCD}, 20')
        a.I(f's_add_u32 {sT}, {sT}, {sN}')
        a.I(f's_lshl_b32 {sT}, {sT}, 7')
        a.I(f's_add_u32 {sT}, {sT}, {MY}')
        a.I(f's_add_u32 {sT}, {sT}, {sL}')
        a.I('s_mov_b32 exec_lo, 0x55555555')
        a.I('s_mov_b32 exec_hi, 0x55555555')
        a.vm_issue(f'buffer_store_dword v12, v1, {S_WS}, {sT} offen sc1', tag='ypub', cond=True)
        a.I('s_mov_b64 exec, -1')
        a.label(join)

    def wo_residual(self):
        a = self.a
        done, l1 = self.lab('res'), self.lab('res1')
        a.I('v_mov_b32 v38, 0')
        a.I(f's_cmp_eq_u32 {sXCD}, 0')
        a.I(f's_cbranch_scc0 {done}')
        a.I('v_lshrrev_b32 v4, 5, v0')
        a.I('v_and_b32 v5, 31, v0')
        a.I(f's_cmp_eq_u32 {sL}, 0')
        a.I(f's_cbranch_scc0 {l1}')
        a.I('v_mul_u32_u24 v6, 1280, v4')
        a.I('v_lshl_add_u32 v6, v5, 1, v6')
        a.I(f's_lshl_b32 {sT}, {sN}, 6')
        a.I(f'buffer_load_ushort v38, v6, {S_X}, {sT} offen')
        a.I('s_waitcnt vmcnt(0)')
        a.I('v_lshlrev_b32 v38, 16, v38')
        a.I(f's_branch {done}')
        a.label(l1)
        a.I('v_lshrrev_b32 v6, 4, v5')
        a.I('v_lshlrev_b32 v6, 7, v6')
        a.I('v_lshl_add_u32 v6, v4, 5, v6')
        a.I('v_and_b32 v7, 14, v5')
        a.I('v_lshl_add_u32 v6, v7, 1, v6')
        a.I(f's_lshl_b32 {sT3}, {sN}, 8')
        a.I(f's_add_u32 {sT3}, {sT3}, {MX}')
        self.poll('resx', [f'buffer_load_dword v39, v6, {S_WS}, {sT3} offen sc1'], [39])
        a.I('v_and_b32 v7, 1, v5')
        a.I('v_cmp_eq_u32 vcc, 1, v7')
        a.I('v_lshlrev_b32 v38, 16, v39')
        a.I('v_and_b32 v39, 0xffff0000, v39')
        a.I('v_cndmask_b32 v38, v38, v39, vcc')
        a.label(done)
        a.vm_reset()

    def gu_phase(self):
        a = self.a
        self.stage_gu()
        for r in range(8, 12):
            a.I(f'v_mov_b32 v{r}, 0x3f803f80')
        self.tr_addr('v2', 32)
        a.I('v_and_b32 v1, 7, v0')
        a.I('v_mul_u32_u24 v1, 2560, v1')
        a.I('v_bfe_u32 v63, v0, 3, 1')
        a.I('v_lshl_add_u32 v1, v63, 6, v1')
        a.I('v_lshrrev_b32 v63, 4, v0')
        a.I('v_lshl_add_u32 v1, v63, 4, v1')
        a.I(f's_mul_i32 {sT3}, {sW}, 640')
        a.I(f's_add_u32 {sT3}, {sT3}, {MY}')
        a.I(f's_add_u32 {sT3}, {sT3}, {sL}')
        a.vm_all()
        sets = [(32, 36), (40, 44)]
        for kk in range(5):
            s = sets[kk & 1]
            self.tr_read(s[0], 'v2', kk * 1024, 32)
            self.tr_read(s[1], 'v2', 5120 + kk * 1024, 32)
            a.I('s_waitcnt lgkmcnt(0)')
            a.I(f'v_mfma_f32_16x16x32_bf16 {q4(48)}, {q4(8)}, {q4(s[0])}, {"0" if kk == 0 else q4(48)}')
            a.I(f'v_mfma_f32_16x16x32_bf16 {q4(52)}, {q4(8)}, {q4(s[1])}, {"0" if kk == 0 else q4(52)}')
        a.I('v_mov_b32 v6, v48')
        a.I('v_mov_b32 v7, v52')
        for kk in range(2):
            self.tr_read(sets[kk][0], 'v2', kk * 1024, 32)
            self.tr_read(sets[kk][1], 'v2', 5120 + kk * 1024, 32)
        loads = [f'buffer_load_dwordx4 {q4(12+4*k)}, v1, {S_WS}, {sT3} offen offset:{k*128} sc1' for k in range(5)]
        self.poll('y', loads, range(12, 32))
        self.stamp('gu_in')
        for kk in range(5):
            A = q4(12 + 4 * kk)
            b0, b1 = sets[kk & 1]
            a.I(f's_waitcnt lgkmcnt({4 if kk < 4 else 0})')
            z = kk == 0
            a.I(f'v_mfma_f32_16x16x32_bf16 {q4(48)}, {A}, {q4(b0)}, {"0" if z else q4(48)}')
            a.I(f'v_mfma_f32_16x16x32_bf16 {q4(52)}, {A}, {q4(b1)}, {"0" if z else q4(52)}')
            a.I(f'v_mfma_f32_16x16x32_bf16 {q4(56)}, {A}, {A}, {"0" if z else q4(56)}')
            a.I(f'v_mfma_f32_16x16x32_bf16 {q4(60)}, {A}, {q4(8)}, {"0" if z else q4(60)}')
            if kk + 2 < 5:
                self.tr_read(sets[kk & 1][0], 'v2', (kk + 2) * 1024, 32)
                self.tr_read(sets[kk & 1][1], 'v2', 5120 + (kk + 2) * 1024, 32)
        for k, D in enumerate((48, 52, 56, 60)):
            a.I(f'v_add_f32 v{D}, v{D}, v{D+1}')
            a.I(f'v_add_f32 v{D+2}, v{D+2}, v{D+3}')
        for D in (48, 52, 56, 60):
            a.I(f'v_add_f32 v{D}, v{D}, v{D+2}')
        for sh in (1, 2, 4):
            a.I(f'v_add_f32_dpp v56, v56, v56 row_shr:{sh} row_mask:0xf bank_mask:0xf bound_ctrl:1')
        a.I('v_lshrrev_b32 v3, 5, v0')
        a.I('v_and_b32 v4, 15, v0')
        a.I('v_bfe_u32 v5, v0, 4, 1')
        a.I(f's_lshl_b32 {sT}, {sW}, 1')
        a.I(f'v_add_u32 v5, {sT}, v5')
        a.I('v_lshl_add_u32 v1, v3, 4, v4')
        a.I('v_lshlrev_b32 v1, 5, v1')
        a.I('v_lshl_add_u32 v1, v5, 2, v1')
        a.I(f'v_add_u32 v1, {MB}, v1')
        a.I('ds_write_b32 v1, v48')
        a.I('ds_write_b32 v1, v52 offset:1024')
        a.I('v_lshlrev_b32 v2, 5, v3')
        a.I('v_lshl_add_u32 v2, v5, 2, v2')
        a.I(f'v_add_u32 v2, {MB + 2048}, v2')
        a.I('ds_write_b32 v2, v60 offset:64')
        a.I('v_lshl_or_b32 v63, v3, 3, 7')
        a.I('v_cmp_eq_u32 vcc, v63, v4')
        a.I(f'v_mov_b32 v63, {JUNK}')
        a.I('v_cndmask_b32 v2, v63, v2, vcc')
        a.I('ds_write_b32 v2, v56')
        a.I(f's_lshl_b32 {sT}, {sW}, 2')
        a.I(f's_add_u32 {sT}, {sT}, {MB + 2048 + 128}')
        a.I('v_lshlrev_b32 v2, 4, v4')
        a.I(f'v_add_u32 v2, {sT}, v2')
        a.I('ds_write_b32 v2, v6')
        a.I('ds_write_b32 v2, v7 offset:256')
        a.I('s_waitcnt lgkmcnt(0)')
        a.I('s_barrier')
        fin, join = self.lab('gfin'), self.lab('gjoin')
        a.I(f's_cmp_eq_u32 {sW}, 3')
        a.I(f's_cbranch_scc1 {fin}')
        a.I('s_barrier')
        a.I(f's_branch {join}')
        a.label(fin)
        a.I('v_lshrrev_b32 v3, 5, v0')
        a.I('v_bfe_u32 v4, v0, 4, 1')
        a.I('v_and_b32 v5, 15, v0')
        a.I('v_lshl_add_u32 v1, v4, 4, v5')
        a.I('v_lshlrev_b32 v1, 5, v1')
        a.I('v_lshl_add_u32 v1, v3, 10, v1')
        a.I(f'v_add_u32 v1, {MB}, v1')
        a.I(f'ds_read_b128 {q4(12)}, v1')
        a.I(f'ds_read_b128 {q4(16)}, v1 offset:16')
        a.I('v_lshlrev_b32 v2, 5, v4')
        a.I(f'v_add_u32 v2, {MB + 2048}, v2')
        a.I(f'ds_read_b128 {q4(20)}, v2')
        a.I(f'ds_read_b128 {q4(24)}, v2 offset:16')
        a.I(f'ds_read_b128 {q4(28)}, v2 offset:64')
        a.I(f'ds_read_b128 {q4(32)}, v2 offset:80')
        a.I('v_lshlrev_b32 v2, 4, v5')
        a.I('v_lshl_add_u32 v2, v3, 8, v2')
        a.I(f'v_add_u32 v2, {MB + 2048 + 128}, v2')
        a.I(f'ds_read_b128 {q4(36)}, v2')
        a.I('s_waitcnt lgkmcnt(0)')
        a.I('s_barrier')
        for base in (12, 20, 28):
            for r in range(4):
                a.I(f'v_add_f32 v{base+r}, v{base+r}, v{base+4+r}')
        for base in (12, 20, 28, 36):
            a.I(f'v_add_f32 v{base}, v{base}, v{base+1}')
            a.I(f'v_add_f32 v{base+2}, v{base+2}, v{base+3}')
        for base in (12, 20, 28, 36):
            a.I(f'v_add_f32 v{base}, v{base}, v{base+2}')
        self.ln_stats('v20', 'v28', 'v22', 'v23')
        a.I('v_fma_f32 v12, -v22, v36, v12')
        a.I('v_mul_f32 v12, v12, v23')
        a.I('v_mov_b32 v13, v12')
        a.I('v_permlane32_swap_b32 v13, v14')
        a.I('v_max_f32 v12, 0, v12')
        a.I('v_mul_f32 v12, v12, v14')
        a.I('v_mov_b32_dpp v13, v12 quad_perm:[1,0,3,2] row_mask:0xf bank_mask:0xf')
        a.I('v_cvt_pk_bf16_f32 v12, v12, v13')
        a.I('v_min_u32 v12, -2, v12')
        a.I('v_lshlrev_b32 v1, 1, v5')
        a.I('v_lshl_add_u32 v1, v4, 5, v1')
        a.I(f's_lshl_b32 {sT}, {sU}, 7')
        a.I(f's_add_u32 {sT}, {sT}, {MH}')
        a.I(f's_add_u32 {sT}, {sT}, {sL}')
        a.I('s_mov_b32 exec_lo, 0x55555555')
        a.I('s_mov_b32 exec_hi, 0')
        a.vm_issue(f'buffer_store_dword v12, v1, {S_WS}, {sT} offen sc1', tag='hpub', cond=True)
        a.I('s_mov_b64 exec, -1')
        a.label(join)

    def dn_phase(self):
        a = self.a
        self.stage_dn()
        nores = self.lab('nores')
        a.I(f's_cmp_eq_u32 {sW}, 3')
        a.I(f's_cbranch_scc0 {nores}')
        a.I('v_bfe_u32 v4, v0, 3, 1')
        a.I('v_and_b32 v5, 7, v0')
        a.I('v_lshlrev_b32 v1, 6, v4')
        a.I('v_lshl_add_u32 v1, v5, 2, v1')
        a.I(f's_lshr_b32 {sT3}, {sD}, 1')
        a.I(f's_lshl_b32 {sT3}, {sT3}, 7')
        a.I(f's_and_b32 {sT2}, {sD}, 1')
        a.I(f's_lshl_b32 {sT2}, {sT2}, 5')
        a.I(f's_add_u32 {sT3}, {sT3}, {sT2}')
        a.I(f's_add_u32 {sT3}, {sT3}, {MY}')
        a.I(f's_add_u32 {sT3}, {sT3}, {sL}')
        for g in range(8):
            a.I(f'v_add_u32 v{20+g}, {g*2560}, v1')
        self.poll('resy', [f'buffer_load_dword v{12+g}, v{20+g}, {S_WS}, {sT3} offen sc1' for g in range(8)], range(12, 20))
        a.I('v_mov_b32 v2, 0')
        a.I('v_mov_b32 v3, 0')
        for g in range(8):
            a.I(f'v_lshlrev_b32 v62, 16, v{12+g}')
            a.I(f'v_and_b32 v63, 0xffff0000, v{12+g}')
            a.I('v_add_f32 v2, v2, v62')
            a.I('v_add_f32 v3, v3, v63')
        a.I('v_lshlrev_b32 v1, 6, v4')
        a.I('v_lshl_add_u32 v1, v5, 3, v1')
        a.I(f'v_add_u32 v1, {MB + 512}, v1')
        a.I('s_mov_b64 exec, 0xffff')
        a.I('ds_write_b64 v1, v[2:3]')
        a.I('s_mov_b64 exec, -1')
        a.label(nores)
        self.tr_addr('v2', 32)
        a.I('v_and_b32 v1, 1, v0')
        a.I('v_lshlrev_b32 v1, 5, v1')
        a.I('v_bfe_u32 v63, v0, 4, 1')
        a.I('v_lshl_add_u32 v1, v63, 4, v1')
        a.I('v_lshrrev_b32 v63, 5, v0')
        a.I('v_lshl_add_u32 v1, v63, 7, v1')
        a.I(f's_mul_i32 {sT3}, {sW}, {24*128}')
        a.I(f's_add_u32 {sT3}, {sT3}, {MH}')
        a.I(f's_add_u32 {sT3}, {sT3}, {sL}')
        a.vm_all()
        sets = [4, 8]
        for kk in range(2):
            self.tr_read(sets[kk], 'v2', kk * 1024, 32)
        loads = [f'buffer_load_dwordx4 {q4(12+4*k)}, v1, {S_WS}, {sT3} offen offset:{k*256} sc1' for k in range(12)]
        self.poll_dn(loads)
        self.stamp('dn_in')
        for kk in range(12):
            a.I(f's_waitcnt lgkmcnt({2 if kk < 11 else 0})')
            a.I(f'v_mfma_f32_16x16x32_bf16 {q4(60)}, {q4(12+4*kk)}, {q4(sets[kk & 1])}, {"0" if kk == 0 else q4(60)}')
            if kk + 2 < 12:
                self.tr_read(sets[kk & 1], 'v2', (kk + 2) * 1024, 32)
        a.I('v_and_b32 v1, 15, v0')
        a.I('v_lshlrev_b32 v1, 2, v1')
        a.I(f's_lshl_b32 {sT}, {sW}, 7')
        a.I(f's_add_u32 {sT}, {sT}, {MB}')
        a.I(f'v_add_u32 v1, {sT}, v1')
        a.I('s_mov_b64 exec, 0xffff')
        a.I('ds_write_b32 v1, v60')
        a.I('ds_write_b32 v1, v61 offset:64')
        a.I('s_mov_b64 exec, -1')
        a.I('s_waitcnt lgkmcnt(0)')
        a.I('s_barrier')
        fin, join = self.lab('dfin'), self.lab('djoin')
        a.I(f's_cmp_eq_u32 {sW}, 3')
        a.I(f's_cbranch_scc1 {fin}')
        a.I('s_barrier')
        a.I(f's_branch {join}')
        a.label(fin)
        a.I('v_bfe_u32 v4, v0, 3, 1')
        a.I('v_and_b32 v5, 7, v0')
        a.I('v_lshlrev_b32 v1, 6, v4')
        a.I('v_lshl_add_u32 v1, v5, 3, v1')
        a.I(f'v_add_u32 v1, {MB}, v1')
        for w in range(5):
            a.I(f'ds_read_b64 v[{12+2*w}:{13+2*w}], v1 offset:{w*128}')
        a.I('s_waitcnt lgkmcnt(0)')
        a.I('s_barrier')
        for k in range(2):
            a.I(f'v_add_f32 v{12+k}, v{12+k}, v{14+k}')
            a.I(f'v_add_f32 v{16+k}, v{16+k}, v{18+k}')
        for k in range(2):
            a.I(f'v_add_f32 v{12+k}, v{12+k}, v{16+k}')
        for k in range(2):
            a.I(f'v_add_f32 v{12+k}, v{12+k}, v{20+k}')
        a.I('v_cvt_pk_bf16_f32 v12, v12, v13')
        last = self.lab('dlast')
        a.I('s_mov_b64 exec, 0xffff')
        a.I(f's_cmp_eq_u32 {sL}, 0')
        a.I(f's_cbranch_scc0 {last}')
        a.I('v_min_u32 v12, -2, v12')
        a.I('v_lshlrev_b32 v1, 5, v4')
        a.I('v_lshl_add_u32 v1, v5, 2, v1')
        a.I(f's_lshl_b32 {sT}, {sD}, 7')
        a.I(f's_add_u32 {sT}, {sT}, {MX}')
        a.vm_issue(f'buffer_store_dword v12, v1, {S_WS}, {sT} offen sc1', tag='xpub', cond=True)
        a.I('s_mov_b64 exec, -1')
        a.I(f's_branch {join}')
        a.label(last)
        a.I('v_mul_u32_u24 v1, 1280, v4')
        a.I('v_lshl_add_u32 v1, v5, 2, v1')
        a.I(f's_lshl_b32 {sT}, {sD}, 5')
        a.vm_issue(f'buffer_store_dword v12, v1, {S_OUT}, {sT} offen', tag='out', cond=True)
        a.I('s_mov_b64 exec, -1')
        a.label(join)

    def poll_dn(self, loads):
        self.poll('h', loads, range(12, 60))

    def kernel(self):
        a = self.a
        self.prologue()
        self.stamp('start')
        self.clear_mail()
        self.pass1()
        a.label('L_chain')
        a.vm_done = 0
        a.vm = []
        gu, after = self.lab('gu'), self.lab('after_b')
        a.I(f's_cmp_eq_u32 {sWO}, 1')
        a.I(f's_cbranch_scc0 {gu}')
        self.wo_residual()
        self.wo_phase()
        self.stamp('y_pub')
        nodn = self.lab('nodn')
        a.I(f's_cmp_eq_u32 {sDN}, 1')
        a.I(f's_cbranch_scc0 {nodn}')
        self.dn_phase()
        self.stamp('x_pub')
        a.label(nodn)
        a.I(f's_branch {after}')
        a.label(gu)
        self.gu_phase()
        self.stamp('h_pub')
        a.label(after)
        a.I(f's_cmp_eq_u32 {sL}, 0')
        a.I('s_cbranch_scc0 L_end')
        a.I(f's_mov_b32 {sL}, {LSTR}')
        noq = self.lab('noq2')
        a.I(f's_cmp_eq_u32 {sQ}, 1')
        a.I(f's_cbranch_scc0 {noq}')
        a.vm = []
        a.vm_done = 0
        self.stage_wq(tag='wq2')
        self.q_a_setup(1)
        self.poll('x', self.q_a_loads(1), range(12, 32), execmask=('0x33333333', '0x33333333'))
        self.stamp('x_in')
        self.q_compute()
        self.stamp('q2_pub')
        a.label(noq)
        a.vm = []
        a.vm_done = 0
        self.pass2()
        a.I('s_branch L_chain')
        a.label('L_end')
        a.I('s_endpgm')

    def text(self):
        self.kernel()
        head = f"""; Persistent two-layer decode kernel: K and part of V stay in registers / LDS between the layers.
; @launch grid=(256,1,1) block=(256,1,1) lds={LDS_BYTES}
.amdgcn_target "amdgcn-amd-amdhsa--gfx950"
.text
.globl {NAME}
.p2align 8
.type {NAME},@function
{NAME}:
"""
        tail = f"""
.section .rodata,"a"
.p2align 6
.amdhsa_kernel {NAME}
  .amdhsa_next_free_vgpr 512
  .amdhsa_next_free_sgpr 102
  .amdhsa_accum_offset 256
  .amdhsa_group_segment_fixed_size 0
  .amdhsa_kernarg_size 96
  .amdhsa_user_sgpr_count 2
  .amdhsa_user_sgpr_kernarg_segment_ptr 1
  .amdhsa_system_sgpr_workgroup_id_x 1
.end_amdhsa_kernel
"""
        return head + self.a.text() + tail


DEFAULT = dict(F=16, kvpol=' nt', npol=' nt', wpol=' nt', stamps=False)


def generate(**kw):
    o = dict(DEFAULT)
    o.update(kw)
    g = Gen(o)
    t = g.text()
    return t, g


if __name__ == '__main__':
    t, g = generate()
    out = sys.argv[1] if len(sys.argv) > 1 else 'interleave_layers__mha_block_cached__glu_gated_reglu__decode.s'
    open(out, 'w').write(t)
    print('wrote', out, len(t), 'bytes; nops', g.a.nops)
```
